```python
import torch

def _softmax(x, axis=-1):
    return torch.softmax(x, dim=axis)
def _gelu(x):
    return torch.nn.functional.gelu(x, approximate="tanh")
def _silu(x):
    return torch.nn.functional.silu(x)
def _sigmoid(x):
    return torch.sigmoid(x)
def _layernorm(x, axis=-1, eps=1e-5):
    m = x.mean(dim=axis, keepdim=True)
    v = x.var(dim=axis, keepdim=True, unbiased=False)
    return (x - m) / torch.sqrt(v + eps)
def _scatter_add(tgt, idx, src, axis=0):
    return tgt.clone().index_add_(axis, idx, src)
def _segment_sum(src, seg, n):
    out = torch.zeros((n,) + src.shape[1:], dtype=src.dtype)
    return out.index_add_(0, seg, src)
def _pad(x, pw):
    flat = tuple(v for pair in reversed(pw) for v in pair)
    return torch.nn.functional.pad(x, flat)

kernel_name = 'gated_mix__gqa_block_cached__glu_gated_glu__decode'

def setup_inputs():

    _w = (lambda a: (lambda t: t.to(torch.bfloat16) if t.is_floating_point() else t)(torch.as_tensor(a)))
    def _A_setup():
        B, Sq, D = 8, 1, 512
        Hq, Hkv, Sk, Dh = 32, 8, 8192, 128
        assert Hq % Hkv == 0, (Hq, Hkv)
        return {
            "x": _w((lambda *s: torch.randn(*s, dtype=torch.bfloat16) * 0.05)(B, Sq, D)),
            "k_cache": _w((lambda *s: torch.randn(*s, dtype=torch.bfloat16) * 6.4)(B, Hkv, Sk, Dh)),
            "v_cache": _w((lambda *s: torch.randn(*s, dtype=torch.bfloat16) * 0.4)(B, Hkv, Sk, Dh)),
            "wq": _w((lambda *s: torch.randn(*s, dtype=torch.bfloat16) * 6.4)(D, Hq * Dh) * (D ** -0.5)),
            "wo": _w((lambda *s: torch.randn(*s, dtype=torch.bfloat16) * 0.4)(Hq * Dh, D) * ((Hq * Dh) ** -0.5)),
        }
    _A_in = _A_setup()

    def _B_setup():
        B, S, D, F = 8, 1, 512, 1792
        return {
            "x": _w((lambda *s: torch.randn(*s, dtype=torch.bfloat16) * 0.05)(B, S, D)),
            "w_gate": _w((lambda *s: torch.randn(*s, dtype=torch.bfloat16) * 0.4)(D, F)),
            "w_up": _w((lambda *s: torch.randn(*s, dtype=torch.bfloat16) * 0.05)(D, F)),
            "w_down": _w((lambda *s: torch.randn(*s, dtype=torch.bfloat16) * 0.05)(F, D)),
        }
    _B_in = _B_setup()

    return {
        "A_x": _A_in["x"],
        "A_k_cache": _A_in["k_cache"],
        "A_v_cache": _A_in["v_cache"],
        "A_wq": _A_in["wq"],
        "A_wo": _A_in["wo"],
        "B_x": _B_in["x"],
        "B_w_gate": _B_in["w_gate"],
        "B_w_up": _B_in["w_up"],
        "B_w_down": _B_in["w_down"],
        "gate_w": _w((lambda *s: torch.randn(*s, dtype=torch.bfloat16) * 0.05)(512) * 16.0),
    }

def reference(A_x, A_k_cache, A_v_cache, A_wq, A_wo, B_x, B_w_gate, B_w_up, B_w_down, gate_w):
    def _A_ref(x, k_cache, v_cache, wq, wo):
        B, Sq, D = x.shape
        Hq, Dh = 32, 128
        Hkv = k_cache.shape[1]
        rep = Hq // Hkv
        q = (lambda x, *d: x.permute(*d))((x @ wq).reshape(B, Sq, Hq, Dh), 0, 2, 1, 3)
        k = (lambda x, n, axis: torch.repeat_interleave(x, n, dim=axis))(k_cache, rep, axis=1)
        v = (lambda x, n, axis: torch.repeat_interleave(x, n, dim=axis))(v_cache, rep, axis=1)
        scores = torch.einsum("bhqd,bhkd->bhqk", q, k) * (Dh ** -0.5)
        p = _softmax(scores, axis=-1)
        o = torch.einsum("bhqk,bhkd->bhqd", p, v)
        return (lambda x, *d: x.permute(*d))(o, 0, 2, 1, 3).reshape(B, Sq, Hq * Dh) @ wo

    def _B_ref(x, w_gate, w_up, w_down):
        g = torch.einsum("bsd,df->bsf", x, w_gate)
        u = torch.einsum("bsd,df->bsf", x, w_up)
        h = _sigmoid(g) * u
        return torch.einsum("bsf,fd->bsd", h, w_down)

    x = A_x
    g = _sigmoid((x * gate_w).sum(-1, keepdims=True))
    a = _A_ref(x, A_k_cache, A_v_cache, A_wq, A_wo)
    b = _B_ref(x, B_w_gate, B_w_up, B_w_down)
    return g * a + (1 - g) * b
```

```python
import sys, json, struct
KNAME = "gated_mix__gqa_block_cached__glu_gated_glu__decode_kernel"
HEADER = open("gated_mix__gqa_block_cached__glu_gated_glu__decode.s.ref").read().split("; Override launch")[0]

WS_E = 0
WS_HELLO = 4096
WS_CNT = 2097152
WS_Q = 65536
WS_GU = 262144
WS_PO = 524288
WS_ML = 786432
WS_A = 1048576
WS_STAMP = 256 << 20
L_UP = 0
L_WD = 32768
L_WO = 49152
L_RG = 65536
L_RW = 81920
L_OC = 98304
L_ML = 114688
L_CNT = 115200
L_QI = 115456
LDS_BYTES = 116480

SCALE = (128 ** -0.5) * 1.4426950408889634
def f32(x): return "0x%08x" % struct.unpack("<I", struct.pack("<f", x))[0]

class G:
    def __init__(self): self.L = []; self.n = 0
    def __call__(self, s): self.L.append("  " + s)
    def label(self, s): self.L.append(s + ":")
    def uniq(self, p): self.n += 1; return f"L_{p}_{self.n}"
    def text(self): return "\n".join(self.L) + "\n"

def vr(a, n): return f"v[{a}:{a+n-1}]" if n > 1 else f"v{a}"
def sr(a, n): return f"s[{a}:{a+n-1}]" if n > 1 else f"s{a}"

def build(stamps=False, nt=True, codepf=True, xnt=False, NPRE=4, PW=6, PPRIO=True, LBAR=False, STEAL=True, POOLMAP=0, TPIPE=True, XNOUNIT=False, XNOEXTRA=False, XNOPACE=False, POLL2=False, XSTEAL=True, LDSPOOL=False, XLAT=False, TMAP=0, STATIC=False, NST=6, POLLW=0, SPRIO=True):
    e = G()
    NT = " nt" if nt else ""
    sWG, sW = 2, 3
    SK, SV, SWS, SU, SX, SWO, SWD, SOUT, SGW = 4, 8, 12, 16, 20, 24, 28, 32, 36
    sPTR = 40
    sT0, sT1 = 66, 67
    sB, sHKV, sSPL, sU = 68, 69, 70, 71
    sKV = 72
    sRS, sUOFF, sUOUT, sHASU = 73, 74, 75, 76
    sA, sBt, sCt, sD = 77, 78, 79, 80
    sM0 = 82
    sX8 = 84
    sIT = 85
    sMQ0 = 86
    sMVU = 88
    sMVR = 90
    sNX = 92
    sGRAB = 52
    sTGT = 93
    sPB = 62
    sCO = 63
    sHN = 60
    sLAT = 59
    sVIC = 61
    sVMAX = 58
    sHB = 44
    sRET = 40
    sSEL0, sSEL1 = 94, 95
    sSPIN = 96
    sR2OUT = 97
    sST = 98
    sR2L = 100
    sR2C = 101
    vL, vKO, vVO, vC, vM, vLs, vTMP0, vTMP1, vTMP2, vTMP3, vQO = 1, 2, 3, 4, 5, 6, 7, 8, 9, 10, 11
    vQ = 12; vP = 16; vT = 20; vO = 28; vS = 60
    vKA, vKB, vVA, vVB = 92, 124, 156, 188
    vX = 220
    vF = 236
    vA2 = 238
    vGAM = 244
    NVGPR = 246
    stampno = [0]
    vSTAMP = 245
    def stamp(fixed=None, dyn=False):
        if not stamps: return
        if fixed is None:
            k = stampno[0]; stampno[0] += 1
        else: k = fixed
        assert k < 64
        e(f"s_memrealtime {sr(sST,2)}")
        if dyn:
            e(f"s_add_u32 m0, s{sIT}, {k}")
        e("s_waitcnt lgkmcnt(0)")
        e(f"v_writelane_b32 v{vSTAMP}, s{sST}, {'m0' if dyn else k}")
    def stamp_flush():
        if not stamps: return
        e("s_mov_b64 exec, -1")
        e(f"s_lshl_b32 s81, s{sWG}, 3")
        e(f"s_add_u32 s81, s81, s{sW}")
        e(f"s_lshl_b32 s81, s81, 8")
        e(f"s_add_u32 s81, s81, {WS_STAMP}")
        e(f"v_lshlrev_b32 v{vA2+3}, 2, v{vL}")
        e(f"buffer_store_dword v{vSTAMP}, v{vA2+3}, {sr(SWS,4)}, s81 offen")

    e.L.append(HEADER + f"; @launch grid=(256,1,1) block=(512,1,1) lds={LDS_BYTES}")
    e.L.append('.amdgcn_target "amdgcn-amd-amdhsa--gfx950"')
    e.L.append(".text"); e.L.append(f".globl {KNAME}"); e.L.append(".p2align 8"); e.L.append(f".type {KNAME},@function")
    e.label(KNAME)
    e(f"s_cmp_ge_u32 s{sWG}, 256")
    e("s_cbranch_scc1 L_end")
    e(f"s_load_dwordx16 {sr(sPTR,16)}, s[0:1], 0")
    e(f"s_load_dwordx8 {sr(sPTR+16,8)}, s[0:1], 64")
    e(f"s_load_dwordx2 {sr(sPTR+24,2)}, s[0:1], 96")
    e(f"v_lshrrev_b32 v{vTMP0}, 6, v0")
    e(f"v_and_b32 v{vL}, 63, v0")
    e(f"v_readfirstlane_b32 s{sW}, v{vTMP0}")
    if stamps:
        e(f"v_mov_b32 v{vSTAMP}, 0")
        stamp(fixed=63)
    if codepf:
        e(f"s_getpc_b64 {sr(sM0,2)}")
        e(f"v_lshlrev_b32 v{vTMP1}, 4, v0")
        e.label("L_pc")
        e(f"global_load_dwordx4 {vr(vVB,4)}, v{vTMP1}, {sr(sM0,2)}")
        e(f"v_add_u32 v{vTMP2}, 8192, v{vTMP1}")
        e(f"s_mov_b32 s{sA}, L_code_end-L_pc-16")
        e(f"v_cmp_gt_u32 vcc, s{sA}, v{vTMP2}")
        e(f"s_and_saveexec_b64 {sr(sMQ0,2)}, vcc")
        e("s_cbranch_execz L_pf_skip")
        e(f"global_load_dwordx4 {vr(vVB+4,4)}, v{vTMP2}, {sr(sM0,2)}")
        e.label("L_pf_skip")
        e("s_mov_b64 exec, -1")
    e(f"v_lshlrev_b32 v{vVO}, 4, v{vL}")
    e(f"v_bfe_u32 v{vTMP0}, v{vL}, 2, 2")
    e(f"v_lshlrev_b32 v{vKO}, 8, v{vTMP0}")
    e(f"v_lshrrev_b32 v{vTMP1}, 4, v{vL}")
    e(f"v_lshl_add_u32 v{vKO}, v{vTMP1}, 6, v{vKO}")
    e(f"v_and_b32 v{vTMP2}, 3, v{vL}")
    e(f"v_lshl_add_u32 v{vKO}, v{vTMP2}, 4, v{vKO}")
    e(f"v_lshlrev_b32 v{vTMP3}, 4, v{vTMP0}")
    e(f"v_lshl_add_u32 v{vTMP3}, v{vTMP1}, 2, v{vTMP3}")
    e(f"v_lshlrev_b32 v{vA2+1}, 10, v{vTMP2}")
    e(f"v_lshl_add_u32 v{vA2+1}, v{vTMP3}, 1, v{vA2+1}")
    e(f"v_lshlrev_b32 v{vA2+2}, 4, v{vTMP2}")
    e(f"s_and_b32 s{sX8}, s{sWG}, 7")
    e(f"s_lshr_b32 s{sU}, s{sWG}, 3")
    e(f"s_lshr_b32 s{sB}, s{sWG}, 5")
    e(f"s_lshr_b32 s{sSPL}, s{sX8}, 1")
    e(f"s_xor_b32 s{sCt}, s{sX8}, s{sSPL}")
    e(f"s_and_b32 s{sCt}, s{sCt}, 1")
    e(f"s_and_b32 s{sHKV}, s{sU}, 3")
    e(f"s_lshl_b32 s{sHKV}, s{sHKV}, 1")
    e(f"s_add_u32 s{sHKV}, s{sHKV}, s{sCt}")
    e(f"s_lshl_b32 s{sKV}, s{sB}, 3")
    e(f"s_add_u32 s{sKV}, s{sKV}, s{sHKV}")
    e(f"s_lshl_b32 s{sKV}, s{sKV}, 2")
    e(f"s_add_u32 s{sKV}, s{sKV}, s{sSPL}")
    e(f"s_lshl_b32 s{sKV}, s{sKV}, 19")
    e(f"s_lshl_b32 s{sCt}, s{sW}, 12")
    e(f"s_add_u32 s{sKV}, s{sKV}, s{sCt}")
    e(f"s_mul_i32 s{sCt}, s{sX8}, 14")
    e(f"s_add_u32 s{sCt}, s{sCt}, s{sU}")
    e(f"s_sub_u32 s{sCt}, s{sCt}, 16")
    e(f"s_lshl_b32 s{sA}, s{sX8}, 4")
    e(f"s_add_u32 s{sA}, s{sA}, s{sU}")
    e(f"s_cmp_lt_u32 s{sU}, 30")
    e(f"s_cselect_b32 s{sHASU}, 1, 0")
    if XNOUNIT: e(f"s_mov_b32 s{sHASU}, 0")
    P = lambda i: sPTR + 2 * i
    def srd(d, ptr, nbytes):
        e(f"s_mov_b32 s{d}, s{P(ptr)}"); e(f"s_mov_b32 s{d+1}, s{P(ptr)+1}")
        e(f"s_mov_b32 s{d+2}, {nbytes}"); e(f"s_mov_b32 s{d+3}, 0x20000")
    e(f"s_cmp_lt_u32 s{sU}, 16")
    e("s_cbranch_scc0 L_unit_gu")
    e(f"s_mov_b32 s{sRS}, 8192")
    e(f"s_lshl_b32 s{sUOFF}, s{sA}, 6")
    e(f"s_lshl_b32 s{sUOUT}, s{sA}, 7")
    e(f"s_add_u32 s{sUOUT}, s{sUOUT}, {WS_Q}")
    e("s_waitcnt lgkmcnt(0)")
    srd(SU, 3, 512*8192)
    e("s_branch L_unit_sel")
    e.label("L_unit_gu")
    e(f"s_mov_b32 s{sRS}, 3584")
    e(f"s_cmp_ge_u32 s{sCt}, 56")
    e(f"s_cselect_b32 s{sD}, 56, 0")
    e(f"s_cselect_b32 s{sUOUT}, 7168, 0")
    e("s_waitcnt lgkmcnt(0)")
    e(f"s_cselect_b32 s{SU}, s{P(7)}, s{P(6)}")
    e(f"s_cselect_b32 s{SU+1}, s{P(7)+1}, s{P(6)+1}")
    e(f"s_mov_b32 s{SU+2}, {512*3584}"); e(f"s_mov_b32 s{SU+3}, 0x20000")
    e(f"s_add_u32 s{sUOUT}, s{sUOUT}, {WS_GU}")
    e(f"s_sub_u32 s{sCt}, s{sCt}, s{sD}")
    e(f"s_lshl_b32 s{sUOFF}, s{sCt}, 6")
    e(f"s_lshl_b32 s{sCt}, s{sCt}, 7")
    e(f"s_add_u32 s{sUOUT}, s{sUOUT}, s{sCt}")
    e.label("L_unit_sel")
    srd(SX, 0, 8192)
    vW = vS; vUA = vS + 16; vXB = vT
    e(f"s_cmp_eq_u32 s{sHASU}, 0")
    e("s_cbranch_scc1 L_nounit1")
    e(f"v_mad_u32_u24 v{vA2}, v{vTMP3}, s{sRS}, v{vA2+2}")
    e(f"s_lshl_b32 s{sA}, s{sW}, 6")
    e(f"s_mul_i32 s{sA}, s{sA}, s{sRS}")
    e(f"s_add_u32 s{sA}, s{sA}, s{sUOFF}")
    for t in range(4):
        e(f"buffer_load_dwordx4 {vr(vW+4*t,4)}, v{vA2}, {sr(SU,4)}, s{sA} offen{NT}")
        if t < 3: e(f"s_add_u32 s{sA}, s{sA}, s{sRS}")
    e(f"s_lshl_b32 s{sA}, s{sW}, 7")
    XN = " nt" if xnt else ""
    e(f"buffer_load_dwordx2 {vr(vXB,2)}, v{vA2+1}, {sr(SX,4)}, s{sA} offen{XN}")
    e(f"s_add_u32 s{sA}, s{sA}, 4096")
    e(f"buffer_load_dwordx2 {vr(vXB+2,2)}, v{vA2+1}, {sr(SX,4)}, s{sA} offen{XN}")
    e.label("L_nounit1")
    srd(SWS, 12, 0x20000000)
    e(f"s_load_dwordx2 {sr(sT0,2)}, {sr(P(12),2)}, {WS_E}")
    srd(SK, 1, 0x8000000); srd(SV, 2, 0x8000000)

    def issue_half(soff, add, isv, half, slot):
        base = ((vVA, vVB) if isv else (vKA, vKB))[slot] + 16 * half
        e(f"s_add_u32 s{sA}, s{soff}, {add + half*32768}")
        for t in range(4):
            e(f"buffer_load_dwordx4 {vr(base+4*t,4)}, v{vVO if isv else vKO}, {sr(SV if isv else SK,4)}, s{sA} offen offset:{t*1024}{NT}")
    def piece(k):
        tile, isv, half = k // 4, (k // 2) & 1, k & 1
        issue_half(sKV, tile * 65536, isv, half, tile & 1)
    def pair(j):
        k = j // 4
        tile, isv, half = k // 4, (k // 2) & 1, k & 1
        base = ((vVA, vVB) if isv else (vKA, vKB))[tile & 1] + 16 * half
        e(f"s_add_u32 s{sA}, s{sKV}, {tile*65536 + half*32768}")
        for t in (j % 4, j % 4 + 1):
            e(f"buffer_load_dwordx4 {vr(base+4*t,4)}, v{vVO if isv else vKO}, {sr(SV if isv else SK,4)}, s{sA} offen offset:{t*1024}{NT}")
    e("s_barrier")
    for j in range(0, NPRE, 2): pair(j)
    stamp()
    srd(SWO, 4, 4096*1024); srd(SWD, 8, 1792*1024); srd(SOUT, 10, 8192); srd(SGW, 9, 1024)
    e(f"s_lshr_b32 s{sPB}, s{sKV}, 21")
    e(f"s_lshl_b32 s{sCO}, s{sPB}, 8")
    e(f"s_add_u32 s{sCO}, s{sCO}, {WS_CNT}")
    e(f"s_lshl_b32 s{sPB}, s{sPB}, 21")
    e(f"v_bfe_u32 v{vTMP0}, v{vL}, 2, 2")
    e(f"v_lshrrev_b32 v{vTMP1}, 4, v{vL}")
    e(f"v_and_b32 v{vTMP2}, 3, v{vL}")
    e(f"v_cmp_eq_u32 {sr(sMQ0,2)}, 0, v{vTMP2}")
    e(f"v_cmp_eq_u32 {sr(sMVU,2)}, v{vTMP0}, v{vTMP1}")
    e(f"v_bfe_u32 v{vTMP3}, v{vL}, 3, 1")
    e(f"v_lshrrev_b32 v{vA2}, 5, v{vL}")
    e(f"v_cmp_eq_u32 {sr(sMVR,2)}, v{vTMP3}, v{vA2}")
    e(f"v_lshlrev_b32 v{vQO}, 9, v{vTMP0}")
    e(f"v_lshl_add_u32 v{vQO}, v{vTMP1}, 7, v{vQO}")
    e(f"v_lshl_add_u32 v{vQO}, v{vTMP2}, 5, v{vQO}")
    e(f"s_mov_b32 s{sSEL0}, 0x05040100")
    e(f"s_mov_b32 s{sSEL1}, 0x07060302")
    e(f"v_mov_b32 v{vC}, {f32(SCALE)}")
    e(f"v_mov_b32 v{vM}, {f32(-1e30)}")
    e(f"v_mov_b32 v{vLs}, 0")
    for i in range(32): e(f"v_mov_b32 v{vO+i}, 0")
    e("s_waitcnt lgkmcnt(0)")
    e(f"s_mul_i32 s{sT0}, s{sT0}, 0x0019660d")
    e(f"s_add_u32 s{sT0}, s{sT0}, 0x3c6ef35f")
    e(f"s_mul_i32 s{sT1}, s{sT1}, 0x41c64e6d")
    e(f"s_add_u32 s{sT1}, s{sT1}, 0x3039")
    def r2_pub_voff(dst):
        e(f"v_lshrrev_b32 v{vTMP0}, 3, v{vL}")
        e(f"v_bfe_u32 v{vTMP1}, v{vL}, 1, 2")
        e(f"v_lshl_add_u32 v{vTMP0}, v{vTMP0}, 5, v{vTMP1}")
        e(f"v_and_b32 v{vTMP1}, 1, v{vL}")
        e(f"v_lshlrev_b32 v{vTMP1}, 5, v{vTMP1}")
        e(f"v_lshl_add_u32 v{dst}, v{vTMP0}, 12, v{vTMP1}")
    e(f"s_cmp_lg_u32 s{sW}, 7")
    e("s_cbranch_scc1 L_noclear")
    e(f"v_mov_b32 v{vTMP1}, {L_CNT}")
    for i in range(4): e(f"v_mov_b32 v{vX+i}, 0")
    e(f"ds_write_b128 v{vTMP1}, {vr(vX,4)}")
    e.label("L_noclear")
    def clears():
        for i in range(4): e(f"v_mov_b32 v{vP+i}, -1")
        e(f"s_lshr_b32 s{sA}, s{sKV}, 19")
        e(f"s_lshl_b32 s{sBt}, s{sA}, 10")
        e(f"s_add_u32 s{sBt}, s{sBt}, {WS_PO}")
        e(f"buffer_store_dwordx4 {vr(vP,4)}, v{vVO}, {sr(SWS,4)}, s{sBt} offen sc1")
        r2_pub_voff(vTMP3)
        e(f"s_lshl_b32 s{sBt}, s{sX8}, 14")
        e(f"s_lshl_b32 s{sCt}, s{sU}, 6")
        e(f"s_add_u32 s{sBt}, s{sBt}, s{sCt}")
        e(f"s_add_u32 s{sBt}, s{sBt}, {WS_A}")
        e(f"buffer_store_dwordx4 {vr(vP,4)}, v{vTMP3}, {sr(SWS,4)}, s{sBt} offen sc1")
        e(f"buffer_store_dwordx4 {vr(vP,4)}, v{vTMP3}, {sr(SWS,4)}, s{sBt} offen offset:16 sc1")
        e(f"s_lshr_b32 s{sCt}, s{sA}, 2")
        e(f"s_lshl_b32 s{sCt}, s{sCt}, 7")
        e(f"s_lshl_b32 s{sA}, s{sSPL}, 3")
        e(f"s_add_u32 s{sCt}, s{sCt}, s{sA}")
        e(f"s_add_u32 s{sCt}, s{sCt}, {WS_ML}")
        e(f"v_lshlrev_b32 v{vTMP0}, 5, v{vL}")
        e("s_mov_b64 exec, 15")
        e(f"buffer_store_dwordx2 {vr(vP,2)}, v{vTMP0}, {sr(SWS,4)}, s{sCt} offen sc1")
        e("s_mov_b64 exec, -1")
        e(f"v_mov_b32 v{vTMP0}, 0")
        e(f"s_lshl_b32 s{sA}, s{sSPL}, 1")
        e(f"s_add_u32 s{sA}, s{sA}, s{sCO}")
        e("s_mov_b64 exec, 1")
        e(f"buffer_store_short v{vTMP0}, v{vTMP0}, {sr(SWS,4)}, s{sA} offen sc1")
        e("s_mov_b64 exec, -1")
        e(f"s_cmp_ge_u32 s{sU}, 16")
        e("s_cbranch_scc1 L_noclear2")
        e(f"s_cmp_lt_u32 s{sU}, 14")
        e(f"s_cselect_b32 s{sA}, -1, 0")
        for i in range(4): e(f"v_mov_b32 v{vT+4+i}, s{sA}")
        e(f"buffer_store_dwordx4 {vr(vT+4,4)}, v{vTMP3}, {sr(SWS,4)}, s{sBt} offen offset:2048 sc1")
        e(f"buffer_store_dwordx4 {vr(vT+4,4)}, v{vTMP3}, {sr(SWS,4)}, s{sBt} offen offset:2064 sc1")
        e.label("L_noclear2")
    e(f"s_cmp_eq_u32 s{sHASU}, 0")
    e("s_cbranch_scc1 L_nounit2")
    e(f"s_waitcnt vmcnt({NPRE})")
    stamp()
    for m in range(8):
        sel = sSEL1 if m & 1 else sSEL0
        e(f"v_perm_b32 v{vUA+2*m}, v{vW+4+(m>>1)}, v{vW+(m>>1)}, s{sel}")
        e(f"v_perm_b32 v{vUA+2*m+1}, v{vW+12+(m>>1)}, v{vW+8+(m>>1)}, s{sel}")
    e("s_nop 1")
    for m in range(8):
        e(f"v_mfma_f32_16x16x16_bf16 {vr(vKB+4*m,4)}, {vr(vUA+2*m,2)}, {vr(vXB,2)}, 0")
        e(f"v_mfma_f32_16x16x16_bf16 {vr(vVB+4*m,4)}, {vr(vUA+2*m,2)}, {vr(vXB+2,2)}, 0")
    e(f"v_lshrrev_b32 v{vTMP1}, 4, v{vL}")
    e(f"v_and_b32 v{vTMP2}, 3, v{vL}")
    e(f"v_lshlrev_b32 v{vTMP1}, 10, v{vTMP1}")
    e(f"v_lshl_add_u32 v{vTMP1}, v{vTMP2}, 7, v{vTMP1}")
    e(f"s_lshl_b32 s{sA}, s{sW}, 12")
    e(f"v_add_u32 v{vTMP1}, s{sA}, v{vTMP1}")
    e("s_nop 3")
    e(f"s_mov_b64 exec, {sr(sMVU,2)}")
    for m in range(8):
        e(f"ds_write_b128 v{vTMP1}, {vr(vKB+4*m,4)} offset:{L_UP + m*16}")
    for m in range(8):
        e(f"ds_write_b128 v{vTMP1}, {vr(vVB+4*m,4)} offset:{L_UP + 512+m*16}")
    e("s_mov_b64 exec, -1")
    e.label("L_nounit2")
    e("s_waitcnt lgkmcnt(0)")
    e("s_barrier")
    e(f"s_cmp_eq_u32 s{sHASU}, 0")
    e("s_cbranch_scc1 L_nounit3")
    e(f"s_cmp_ge_u32 s{sW}, 4")
    e("s_cbranch_scc1 L_nounit3")
    e(f"v_lshrrev_b32 v{vTMP0}, 5, v0")
    e(f"v_and_b32 v{vTMP1}, 7, v0")
    e(f"v_bfe_u32 v{vTMP2}, v0, 3, 2")
    e(f"v_lshlrev_b32 v{vTMP3}, 7, v{vTMP0}")
    e(f"v_lshl_add_u32 v{vTMP3}, v{vTMP1}, 4, v{vTMP3}")
    e(f"v_lshl_add_u32 v{vTMP3}, v{vTMP2}, 2, v{vTMP3}")
    for Pi in range(32):
        e(f"ds_read_b32 v{vKB+Pi}, v{vTMP3} offset:{L_UP + Pi*1024}")
    e(f"v_and_b32 v{vTMP1}, 31, v0")
    e(f"v_lshlrev_b32 v{vTMP0}, 14, v{vTMP0}")
    e(f"v_lshl_add_u32 v{vA2+1}, v{vTMP1}, 2, v{vTMP0}")
    e(f"v_mov_b32 v{vVB+1}, s{sT0}")
    e(f"v_mov_b32 v{vVB+3}, s{sT1}")
    e("s_waitcnt lgkmcnt(0)")
    n = 32
    while n > 1:
        n //= 2
        for i in range(n):
            e(f"v_add_f32 v{vKB+i}, v{vKB+i}, v{vKB+i+n}")
    e("s_nop 1")
    e(f"v_mov_b32_dpp v{vKB+1}, v{vKB} quad_perm:[1,1,1,1] row_mask:0xf bank_mask:0xf")
    e(f"v_mov_b32_dpp v{vKB+2}, v{vKB} quad_perm:[2,2,2,2] row_mask:0xf bank_mask:0xf")
    e(f"v_mov_b32_dpp v{vKB+3}, v{vKB} quad_perm:[3,3,3,3] row_mask:0xf bank_mask:0xf")
    e(f"v_cvt_pk_bf16_f32 v{vVB}, v{vKB}, v{vKB+1}")
    e(f"v_cvt_pk_bf16_f32 v{vVB+2}, v{vKB+2}, v{vKB+3}")
    e(f"s_mov_b64 exec, {sr(sMQ0,2)}")
    e(f"buffer_store_dwordx4 {vr(vVB,4)}, v{vA2+1}, {sr(SWS,4)}, s{sUOUT} offen sc1")
    e("s_mov_b64 exec, -1")
    e("s_nop 1")
    e.label("L_nounit3")
    stamp()
    sQ = sD
    e(f"s_lshl_b32 s{sQ}, s{sB}, 14")
    e(f"s_lshl_b32 s{sA}, s{sHKV}, 11")
    e(f"s_add_u32 s{sQ}, s{sQ}, s{sA}")
    e(f"s_add_u32 s{sQ}, s{sQ}, {WS_Q}")
    def poll(buf):
        r = vX + 8 * buf
        e(f"buffer_load_dwordx4 {vr(r,4)}, v{vQO}, {sr(SWS,4)}, s{sQ} offen sc1")
        e(f"buffer_load_dwordx4 {vr(r+4,4)}, v{vQO}, {sr(SWS,4)}, s{sQ} offen offset:16 sc1")
    def check_tags(regs0, regs1, okl):
        first = True
        for r, t in [(r, sT0) for r in regs0] + [(r, sT1) for r in regs1]:
            if first:
                e(f"v_xor_b32 v{vTMP0}, s{t}, v{r}"); first = False
            else:
                e(f"v_xor_b32 v{vTMP1}, s{t}, v{r}")
                e(f"v_or_b32 v{vTMP0}, v{vTMP0}, v{vTMP1}")
        e(f"v_cmp_ne_u32 vcc, 0, v{vTMP0}")
        e(f"s_cbranch_vccz {okl}")
    e(f"v_mov_b32 v{vA2}, {L_CNT + 8}")
    e(f"v_add_u32 v{vA2+1}, {L_QI}, v{vVO}")
    if XNOPACE: e(f"s_branch L_rest_{NPRE}")
    e(f"s_cmp_eq_u32 s{sW}, {POLLW}")
    e("s_cbranch_scc1 L_poller")
    def flagchk(okl):
        e(f"ds_read_b32 v{vTMP0}, v{vA2}")
        e("s_waitcnt lgkmcnt(0)")
        e(f"v_cmp_ne_u32 vcc, 0, v{vTMP0}")
        e(f"s_cbranch_vccnz {okl}")
    for j in range(NPRE, 32, 2):
        pair(j)
        e(f"s_waitcnt vmcnt({PW})")
        stamp(fixed=24 + j // 2)
        flagchk(f"L_rest_{j+2}")
    e(f"s_mov_b32 s{sSPIN}, 2000000")
    e.label("L_qspin")
    flagchk("L_rest_32")
    e("s_sleep 1")
    e(f"s_sub_u32 s{sSPIN}, s{sSPIN}, 1")
    e(f"s_cmp_lg_u32 s{sSPIN}, 0")
    e("s_cbranch_scc1 L_qspin")
    e("s_branch L_rest_32")
    e.label("L_poller")
    if PPRIO: e("s_setprio 3")
    clears()
    poll(0)
    e(f"v_mov_b32 v{vP}, s{sT0}"); e(f"v_mov_b32 v{vP+1}, s{sT1}")
    e(f"v_mov_b32 v{vTMP0}, 0")
    e(f"s_lshr_b32 s{sA}, s{sKV}, 19")
    e(f"s_lshl_b32 s{sA}, s{sA}, 3")
    e(f"s_add_u32 s{sA}, s{sA}, {WS_HELLO}")
    e("s_waitcnt vmcnt(0)")
    e("s_mov_b64 exec, 1")
    e(f"buffer_store_dwordx2 {vr(vP,2)}, v{vTMP0}, {sr(SWS,4)}, s{sA} offen sc1")
    e("s_mov_b64 exec, -1")
    e(f"s_mov_b32 s{sSPIN}, 200000")
    if POLL2:
        poll(0)
        e.label("L_pl")
        poll(1)
        e("s_waitcnt vmcnt(2)")
        check_tags([vX+1, vX+5], [vX+3, vX+7], "L_pok0")
        poll(0)
        e("s_waitcnt vmcnt(2)")
        check_tags([vX+9, vX+13], [vX+11, vX+15], "L_pok1")
    else:
        e.label("L_pl")
        poll(0)
        e("s_waitcnt vmcnt(0)")
        check_tags([vX+1, vX+5], [vX+3, vX+7], "L_pok0")
    e(f"s_sub_u32 s{sSPIN}, s{sSPIN}, 1")
    e(f"s_cmp_lg_u32 s{sSPIN}, 0")
    e("s_cbranch_scc1 L_pl")
    e.label("L_pok1")
    for i in range(4): e(f"v_mov_b32 v{vQ+i}, v{vX+8+2*i}")
    e("s_branch L_pok")
    e.label("L_pok0")
    for i in range(4): e(f"v_mov_b32 v{vQ+i}, v{vX+2*i}")
    e.label("L_pok")
    stamp(fixed=10)
    e(f"ds_write_b128 v{vA2+1}, {vr(vQ,4)}")
    e(f"v_mov_b32 v{vTMP0}, 1")
    e("s_waitcnt lgkmcnt(0)")
    e(f"ds_write_b32 v{vA2}, v{vTMP0}")
    if PPRIO: e("s_setprio 0")
    for j in range(NPRE, 32, 2):
        e.label(f"L_rest_{j}")
        pair(j)
    e.label("L_rest_32")
    e(f"ds_read_b128 {vr(vQ,4)}, v{vA2+1}")
    e("s_waitcnt lgkmcnt(0)")
    stamp()

    NPOOL = (8 - NST) * 8
    def grab():
        e(f"s_lshl_b32 s{sA}, s{sTGT}, 4")
        e(f"s_lshl_b64 {sr(sGRAB,2)}, 1, s{sA}")
        e(f"s_atomic_add_x2 {sr(sGRAB,2)}, {sr(P(12),2)}, s{sCO} glc")
    def pick(lnone):
        lf = e.uniq("pk")
        for v in range(4):
            if v == 1:
                e(f"s_cmp_eq_u32 s{sVMAX}, 1")
                e(f"s_cbranch_scc1 {lnone}")
            e(f"s_add_u32 s{sTGT}, s{sSPL}, {v}")
            e(f"s_and_b32 s{sTGT}, s{sTGT}, 3")
            e(f"s_lshl_b32 s{sA}, s{sTGT}, 4")
            e(f"s_lshr_b64 {sr(sM0,2)}, {sr(sGRAB,2)}, s{sA}")
            e(f"s_and_b32 s{sA}, s{sM0}, 0xffff")
            e(f"s_cmp_lt_u32 s{sA}, {NPOOL}")
            e(f"s_cbranch_scc1 {lf}")
        e(f"s_branch {lnone}")
        e.label(lf)
    def tile(slot):
        K = (vKA, vKB)[slot]; V = (vVA, vVB)[slot]
        oth = slot ^ 1
        lk, lv = e.uniq("nk"), e.uniq("nv")
        if stamps and XLAT:
            e("s_waitcnt vmcnt(8)")
            e(f"s_memrealtime {sr(sM0,2)}")
            e("s_waitcnt lgkmcnt(0)")
            e(f"s_memrealtime {sr(sST,2)}")
            e("s_waitcnt lgkmcnt(0)")
            e(f"s_sub_u32 s{sST}, s{sST}, s{sM0}")
            e(f"s_add_u32 s{sLAT}, s{sLAT}, s{sST}")
        e("s_waitcnt vmcnt(8) lgkmcnt(0)")
        e(f"s_cmp_eq_u32 s{sIT}, 0")
        e(f"s_cbranch_scc1 {lk}")
        lr, lno, lj, ldyn, lng = e.uniq("gr"), e.uniq("gno"), e.uniq("gj"), e.uniq("dyn"), e.uniq("ng")
        e(f"s_add_u32 s{sA}, s{sIT}, 1")
        e(f"s_cmp_ge_u32 s{sA}, {NST}")
        e(f"s_cbranch_scc1 {ldyn}")
        e(f"s_lshl_b32 s{sNX}, s{sA}, 16")
        e(f"s_add_u32 s{sNX}, s{sNX}, s{sKV}")
        e(f"s_branch {lj}")
        e.label(ldyn)
        if SPRIO: e("s_setprio 0")
        e(f"s_cmp_eq_u32 s{sVIC}, 0")
        e(f"s_cbranch_scc1 {lno}")
        e.label(lr)
        e(f"s_lshl_b32 s{sA}, s{sTGT}, 4")
        e(f"s_lshr_b64 {sr(sM0,2)}, {sr(sGRAB,2)}, s{sA}")
        e(f"s_and_b32 s{sBt}, s{sM0}, 0xffff")
        e(f"s_cmp_lt_u32 s{sBt}, {NPOOL}")
        e(f"s_cbranch_scc1 {lr}_ok")
        pick(lno)
        grab()
        e("s_waitcnt lgkmcnt(0)")
        e(f"s_branch {lr}")
        e.label(lno)
        e(f"s_mov_b32 s{sHN}, 0")
        e(f"s_mov_b32 s{sNX}, 0x8000000")
        e(f"s_branch {lj}")
        e.label(f"{lr}_ok")
        e(f"s_lshr_b32 s{sCt}, s{sBt}, 3")
        e(f"s_add_u32 s{sCt}, s{sCt}, {NST}")
        e(f"s_lshl_b32 s{sNX}, s{sCt}, 16")
        e(f"s_and_b32 s{sBt}, s{sBt}, 7")
        e(f"s_lshl_b32 s{sBt}, s{sBt}, 12")
        e(f"s_add_u32 s{sNX}, s{sNX}, s{sBt}")
        e(f"s_lshl_b32 s{sBt}, s{sTGT}, 19")
        e(f"s_add_u32 s{sNX}, s{sNX}, s{sBt}")
        e(f"s_add_u32 s{sNX}, s{sNX}, s{sPB}")
        e(f"s_lshl_b64 {sr(sM0,2)}, 1, s{sA}")
        e(f"s_add_u32 s{sGRAB}, s{sGRAB}, s{sM0}")
        e(f"s_addc_u32 s{sGRAB+1}, s{sGRAB+1}, s{sM0+1}")
        e.label(lj)
        issue_half(sNX, 0, 0, 0, oth); issue_half(sNX, 0, 0, 1, oth)
        e.label(lk)
        e(f"s_mov_b32 s{sVIC}, 0")
        e(f"s_add_u32 s{sA}, s{sIT}, 2")
        e(f"s_cmp_lt_u32 s{sA}, {NST}")
        e(f"s_cbranch_scc1 {lng}")
        e(f"s_cmp_eq_u32 s{sHN}, 0")
        e(f"s_cbranch_scc1 {lng}")
        pick(lng)
        grab()
        e(f"s_mov_b32 s{sVIC}, 1")
        e.label(lng)
        for t in range(8):
            e(f"v_mfma_f32_16x16x32_bf16 {vr(vS+4*t,4)}, {vr(K+4*t,4)}, {vr(vQ,4)}, 0")
        e("s_nop 1")
        for t in range(8):
            e(f"v_mul_f32_dpp v{vT+t}, v{vS+4*t}, v{vC} quad_perm:[0,0,0,0] row_mask:0xf bank_mask:0xf")
            for q in range(1, 4):
                e(f"v_fmac_f32_dpp v{vT+t}, v{vS+4*t+q}, v{vC} quad_perm:[{q},{q},{q},{q}] row_mask:0xf bank_mask:0xf")
        e(f"v_max3_f32 v{vTMP0}, v{vT}, v{vT+1}, v{vT+2}")
        e(f"v_max3_f32 v{vTMP0}, v{vTMP0}, v{vT+3}, v{vT+4}")
        e(f"v_max3_f32 v{vTMP0}, v{vTMP0}, v{vT+5}, v{vT+6}")
        e(f"v_max3_f32 v{vTMP0}, v{vTMP0}, v{vT+7}, v{vM}")
        e(f"v_mov_b32 v{vTMP1}, v{vTMP0}")
        e("s_nop 1")
        e(f"v_permlane32_swap_b32 v{vTMP0}, v{vTMP1}")
        e(f"v_max_f32 v{vTMP0}, v{vTMP0}, v{vTMP1}")
        e(f"v_mov_b32 v{vTMP1}, v{vTMP0}")
        e("s_nop 1")
        e(f"v_permlane16_swap_b32 v{vTMP0}, v{vTMP1}")
        e(f"v_max_f32 v{vTMP0}, v{vTMP0}, v{vTMP1}")
        e(f"v_sub_f32 v{vF}, v{vM}, v{vTMP0}")
        e(f"v_exp_f32 v{vF}, v{vF}")
        e(f"v_mov_b32 v{vM}, v{vTMP0}")
        for t in range(8): e(f"v_sub_f32 v{vT+t}, v{vT+t}, v{vTMP0}")
        for t in range(8): e(f"v_exp_f32 v{vT+t}, v{vT+t}")
        e(f"v_mul_f32 v{vLs}, v{vLs}, v{vF}")
        for i in range(16):
            e(f"v_pk_mul_f32 {vr(vO+2*i,2)}, {vr(vO+2*i,2)}, {vr(vF,2)} op_sel_hi:[1,0]")
        for t in range(8): e(f"v_add_f32 v{vLs}, v{vLs}, v{vT+t}")
        for i in range(4): e(f"v_cvt_pk_bf16_f32 v{vP+i}, v{vT+2*i}, v{vT+2*i+1}")
        e("s_waitcnt vmcnt(8)")
        e(f"s_cmp_eq_u32 s{sIT}, 0")
        e(f"s_cbranch_scc1 {lv}")
        issue_half(sNX, 0, 1, 0, oth); issue_half(sNX, 0, 1, 1, oth)
        e.label(lv)
        for m in range(8):
            sel = sSEL1 if m & 1 else sSEL0
            for rho in range(4):
                e(f"v_perm_b32 v{vS+4*m+rho}, v{V+4*(2*rho+1)+(m>>1)}, v{V+4*(2*rho)+(m>>1)}, s{sel}")
        e("s_nop 0")
        for m in range(8):
            e(f"v_mfma_f32_16x16x32_bf16 {vr(vO+4*m,4)}, {vr(vS+4*m,4)}, {vr(vP,4)}, {vr(vO+4*m,4)}")
        e(f"s_add_u32 s{sIT}, s{sIT}, 1")
        stamp(fixed=39, dyn=True)

    vGU = vX; vHE = vX + 8
    def hello_loads():
        e(f"v_lshlrev_b32 v{vA2+2}, 5, v{vL}")
        e(f"s_mov_b32 s{sA}, {WS_HELLO}")
        e(f"buffer_load_dwordx4 {vr(vHE,4)}, v{vA2+2}, {sr(SWS,4)}, s{sA} offen sc1")
        e(f"buffer_load_dwordx4 {vr(vHE+4,4)}, v{vA2+2}, {sr(SWS,4)}, s{sA} offen offset:16 sc1")
    def gu_loads():
        e(f"s_lshl_b32 s{sBt}, s{sU}, 9")
        e(f"s_lshl_b32 s{sA}, s{sW}, 7")
        e(f"s_add_u32 s{sBt}, s{sBt}, s{sA}")
        e(f"s_add_u32 s{sBt}, s{sBt}, {WS_GU}")
        e(f"s_add_u32 s{sCt}, s{sBt}, 7168")
        e(f"buffer_load_dwordx4 {vr(vGU,4)}, v{vA2+1}, {sr(SWS,4)}, s{sBt} offen sc1")
        e(f"buffer_load_dwordx4 {vr(vGU+4,4)}, v{vA2+1}, {sr(SWS,4)}, s{sCt} offen sc1")
    def extras_issue():
        e(f"v_lshrrev_b32 v{vTMP1}, 4, v{vL}")
        e(f"v_bfe_u32 v{vTMP0}, v{vL}, 3, 1")
        e(f"v_and_b32 v{vTMP2}, 7, v{vL}")
        e(f"v_lshlrev_b32 v{vA2+1}, 14, v{vTMP2}")
        e(f"v_lshl_add_u32 v{vA2+1}, v{vTMP0}, 6, v{vA2+1}")
        e(f"v_lshl_add_u32 v{vA2+1}, v{vTMP1}, 4, v{vA2+1}")
        e(f"s_cmp_gt_u32 s{sW}, 4")
        e("s_cbranch_scc1 L_xi_done")
        e(f"s_cmp_eq_u32 s{sW}, 4")
        e("s_cbranch_scc1 L_xi4")
        e(f"v_lshl_add_u32 v{vTMP3}, v{vTMP1}, 1, v{vTMP0}")
        e(f"v_lshlrev_b32 v{vTMP3}, 10, v{vTMP3}")
        e(f"v_lshl_add_u32 v{vA2}, v{vTMP2}, 4, v{vTMP3}")
        e(f"s_lshl_b32 s{sCt}, s{sU}, 17")
        e(f"s_lshl_b32 s{sA}, s{sW}, 15")
        e(f"s_add_u32 s{sCt}, s{sCt}, s{sA}")
        e(f"s_lshl_b32 s{sA}, s{sX8}, 7")
        e(f"s_add_u32 s{sCt}, s{sCt}, s{sA}")
        e(f"s_lshl_b32 s{sD}, s{sW}, 12")
        for t in range(4):
            e(f"s_add_u32 s{sBt}, s{sD}, {L_WO + t*1024}")
            e(f"s_mov_b32 m0, s{sBt}")
            e(f"s_add_u32 s{sA}, s{sCt}, {t*8192}")
            e(f"buffer_load_dwordx4 v{vA2}, {sr(SWO,4)}, s{sA} offen{NT} lds")
        e(f"s_cmp_ge_u32 s{sU}, 14")
        e("s_cbranch_scc1 L_xi_h")
        e(f"v_lshlrev_b32 v{vTMP3}, 14, v{vTMP0}")
        e(f"v_lshl_add_u32 v{vTMP3}, v{vTMP1}, 12, v{vTMP3}")
        e(f"v_lshl_add_u32 v{vA2}, v{vTMP2}, 4, v{vTMP3}")
        e(f"s_add_u32 s{sBt}, s{sD}, {L_WD}")
        e(f"s_mov_b32 m0, s{sBt}")
        e("s_nop 0")
        for t in range(4):
            e(f"buffer_load_dwordx4 v{vA2}, {sr(SWD,4)}, s{sCt} offen offset:{t*1024}{NT} lds")
        gu_loads()
        e("s_branch L_xi_h")
        e.label("L_xi4")
        e(f"s_lshl_b32 s{sA}, s{sB}, 10")
        e(f"buffer_load_dwordx4 {vr(vGU,4)}, v{vVO}, {sr(SX,4)}, s{sA} offen")
        e(f"buffer_load_dwordx4 {vr(vGU+4,4)}, v{vVO}, {sr(SGW,4)}, 0 offen")
        e.label("L_xi_h")
        hello_loads()
        e.label("L_xi_done")

    def sigmoid(dst, src):
        e(f"v_mul_f32 v{dst}, {f32(-1.4426950408889634)}, v{src}")
        e(f"v_exp_f32 v{dst}, v{dst}")
        e("s_nop 0")
        e(f"v_add_f32 v{dst}, 1.0, v{dst}")
        e(f"v_rcp_f32 v{dst}, v{dst}")

    def r2_core(tag, lw, lr, cnt, raw, At, D, slot_add, halves):
        e(f"s_lshl_b32 s{sA}, s{sW}, 12")
        e(f"v_add_u32 v{vTMP3}, s{sA}, v{vVO}")
        if raw is not None:
            for t in range(4):
                e(f"ds_read_b128 {vr(raw+4*t,4)}, v{vTMP3} offset:{lw + t*1024}")
        e(f"v_lshrrev_b32 v{vTMP0}, 5, v{vL}")
        e(f"v_bfe_u32 v{vTMP1}, v{vL}, 4, 1")
        e(f"v_and_b32 v{vTMP2}, 7, v{vL}")
        e(f"v_lshlrev_b32 v{vTMP0}, 11, v{vTMP0}")
        e(f"v_lshl_add_u32 v{vTMP0}, v{vTMP1}, 7, v{vTMP0}")
        e(f"v_lshl_add_u32 v{vTMP0}, v{vTMP2}, 8, v{vTMP0}")
        e(f"s_add_u32 s{sA}, s{sA}, {lr}")
        e(f"v_add_u32 v{vTMP2}, s{sA}, v{vTMP0}")
        e("s_waitcnt lgkmcnt(0)")
        nm = 8 // halves
        for hf in range(halves):
            if raw is not None:
                for mi in range(nm):
                    m = hf * nm + mi
                    sel = sSEL1 if m & 1 else sSEL0
                    e(f"v_perm_b32 v{At+2*mi}, v{raw+4+(m>>1)}, v{raw+(m>>1)}, s{sel}")
                    e(f"v_perm_b32 v{At+2*mi+1}, v{raw+12+(m>>1)}, v{raw+8+(m>>1)}, s{sel}")
                e("s_nop 1")
            for mi in range(nm):
                e(f"v_mfma_f32_16x16x16_bf16 {vr(D+4*mi,4)}, {vr(At+2*mi,2)}, {vr(vP,2)}, 0")
            e(f"s_nop {7 if nm <= 4 else 3}")
            e(f"s_mov_b64 exec, {sr(sMVR,2)}")
            for mi in range(nm):
                m = hf * nm + mi
                e(f"ds_write_b128 v{vTMP2}, {vr(D+4*mi,4)} offset:{m*16}")
            e("s_mov_b64 exec, -1")
        e(f"v_mov_b32 v{vTMP0}, {cnt}")
        e(f"v_mov_b32 v{vTMP1}, 1")
        e("s_waitcnt lgkmcnt(0)")
        e("s_mov_b64 exec, 1")
        e(f"ds_add_rtn_u32 v{vTMP3}, v{vTMP0}, v{vTMP1}")
        e("s_mov_b64 exec, -1")
        r2_pub_voff(vA2)
        e(f"v_lshlrev_b32 v{vTMP2}, 5, v{vL}")
        e(f"v_add_u32 v{vTMP2}, {lr}, v{vTMP2}")
        e("s_waitcnt lgkmcnt(0)")
        e(f"v_readfirstlane_b32 s{sA}, v{vTMP3}")
        e(f"s_cmp_lg_u32 s{sA}, 3")
        e(f"s_cbranch_scc1 L_r2_done_{tag}")
        acc = vS
        for rnd in range(2):
            for p in range(4):
                pp = rnd * 4 + p
                e(f"ds_read_b128 {vr(acc+8*p,4)}, v{vTMP2} offset:{pp*2048}")
                e(f"ds_read_b128 {vr(acc+8*p+4,4)}, v{vTMP2} offset:{pp*2048 + 16}")
            e("s_waitcnt lgkmcnt(0)")
            for i in range(8):
                e(f"v_add_f32 v{acc+i}, v{acc+i}, v{acc+8+i}")
                e(f"v_add_f32 v{acc+16+i}, v{acc+16+i}, v{acc+24+i}")
            for i in range(8):
                if rnd == 0: e(f"v_add_f32 v{vT+i}, v{acc+i}, v{acc+16+i}")
                else:
                    e(f"v_add_f32 v{acc+i}, v{acc+i}, v{acc+16+i}")
                    e(f"v_add_f32 v{vT+i}, v{vT+i}, v{acc+i}")
        for i in range(8): e(f"v_min_u32 v{vT+i}, -2, v{vT+i}")
        e(f"s_lshl_b32 s{sBt}, s{sX8}, 14")
        e(f"s_lshl_b32 s{sCt}, s{sU}, 6")
        e(f"s_add_u32 s{sBt}, s{sBt}, s{sCt}")
        e(f"s_add_u32 s{sBt}, s{sBt}, {WS_A + slot_add}")
        e(f"buffer_store_dwordx4 {vr(vT,4)}, v{vA2}, {sr(SWS,4)}, s{sBt} offen sc1")
        e(f"buffer_store_dwordx4 {vr(vT+4,4)}, v{vA2}, {sr(SWS,4)}, s{sBt} offen offset:16 sc1")
        e("s_nop 1")
        e.label(f"L_r2_done_{tag}")

    def extras_process():
        e(f"s_cmp_gt_u32 s{sW}, 4")
        e("s_cbranch_scc1 L_xp_done")
        e(f"s_mov_b32 s{sSPIN}, 200000")
        e.label("L_hello_chk")
        check_tags([vHE, vHE+2, vHE+4, vHE+6], [vHE+1, vHE+3, vHE+5, vHE+7], "L_hello_ok")
        e("s_sleep 8")
        hello_loads()
        e("s_waitcnt vmcnt(0)")
        e(f"s_sub_u32 s{sSPIN}, s{sSPIN}, 1")
        e(f"s_cmp_lg_u32 s{sSPIN}, 0")
        e("s_cbranch_scc1 L_hello_chk")
        e.label("L_hello_ok")
        e(f"s_cmp_eq_u32 s{sW}, 4")
        e("s_cbranch_scc1 L_xp4")
        e(f"s_cmp_ge_u32 s{sU}, 14")
        e("s_cbranch_scc1 L_xp_done")
        e(f"s_mov_b32 s{sSPIN}, 200000")
        e.label("L_gu_chk")
        check_tags([vGU+1, vGU+5], [vGU+3, vGU+7], "L_gu_ok")
        e("s_sleep 8")
        gu_loads()
        e("s_waitcnt vmcnt(0)")
        e(f"s_sub_u32 s{sSPIN}, s{sSPIN}, 1")
        e(f"s_cmp_lg_u32 s{sSPIN}, 0")
        e("s_cbranch_scc1 L_gu_chk")
        e.label("L_gu_ok")
        for i in range(2):
            gd, ud = vGU + 2*i, vGU + 4 + 2*i
            e(f"v_lshlrev_b32 v{vT+2*i}, 16, v{gd}")
            e(f"v_and_b32 v{vT+2*i+1}, 0xffff0000, v{gd}")
            sigmoid(vT+2*i, vT+2*i); sigmoid(vT+2*i+1, vT+2*i+1)
            e(f"v_lshlrev_b32 v{vTMP0}, 16, v{ud}")
            e(f"v_and_b32 v{vTMP1}, 0xffff0000, v{ud}")
            e(f"v_mul_f32 v{vT+2*i}, v{vT+2*i}, v{vTMP0}")
            e(f"v_mul_f32 v{vT+2*i+1}, v{vT+2*i+1}, v{vTMP1}")
            e(f"v_cvt_pk_bf16_f32 v{vP+i}, v{vT+2*i}, v{vT+2*i+1}")
        r2_core("g", L_WD, L_RG, L_CNT, vS, vX, vS + 16, 2048, 2)
        e("s_branch L_xp_done")
        e.label("L_xp4")
        for i in range(4):
            e(f"v_lshlrev_b32 v{vT}, 16, v{vGU+i}")
            e(f"v_and_b32 v{vT+1}, 0xffff0000, v{vGU+i}")
            e(f"v_lshlrev_b32 v{vT+2}, 16, v{vGU+4+i}")
            e(f"v_and_b32 v{vT+3}, 0xffff0000, v{vGU+4+i}")
            if i == 0: e(f"v_mul_f32 v{vTMP0}, v{vT}, v{vT+2}")
            else: e(f"v_fmac_f32 v{vTMP0}, v{vT}, v{vT+2}")
            e(f"v_fmac_f32 v{vTMP0}, v{vT+1}, v{vT+3}")
        for sh in (1, 2, 4, 8):
            e("s_nop 1")
            e(f"v_add_f32_dpp v{vTMP0}, v{vTMP0}, v{vTMP0} row_shr:{sh} row_mask:0xf bank_mask:0xf bound_ctrl:0")
        e("s_nop 1")
        e(f"v_add_f32_dpp v{vTMP0}, v{vTMP0}, v{vTMP0} row_bcast:15 row_mask:0xa bank_mask:0xf")
        e("s_nop 1")
        e(f"v_add_f32_dpp v{vTMP0}, v{vTMP0}, v{vTMP0} row_bcast:31 row_mask:0xc bank_mask:0xf")
        e("s_nop 1")
        e(f"v_readlane_b32 s{sA}, v{vTMP0}, 63")
        e("s_nop 1")
        e(f"v_mov_b32 v{vTMP0}, s{sA}")
        sigmoid(vGAM, vTMP0)
        e.label("L_xp_done")

    e(f"s_mov_b32 s{sIT}, 0")
    e(f"s_mov_b32 s{sHN}, 1")
    e(f"s_mov_b32 s{sVIC}, 0")
    e(f"s_mov_b32 s{sLAT}, 0")
    e(f"s_mov_b32 s{sVMAX}, 1")
    e(f"s_mov_b64 {sr(sGRAB,2)}, 0")
    if SPRIO: e("s_setprio 1")
    e.L.append(".p2align 6")
    e.label("L_loop")
    tile(0)
    e(f"s_cmp_eq_u32 s{sIT}, 1")
    e("s_cbranch_scc1 L_x_issue")
    e(f"s_cmp_eq_u32 s{sHN}, 0")
    e("s_cbranch_scc1 L_loop_end")
    e.label("L_loop_b")
    tile(1)
    e(f"s_cmp_eq_u32 s{sIT}, 2")
    e("s_cbranch_scc1 L_x_process")
    e.label("L_loop_c")
    e(f"s_cmp_lg_u32 s{sHN}, 0")
    e("s_cbranch_scc1 L_loop")
    e.label("L_loop_end")
    stamp()
    if stamps and XLAT:
        e(f"v_readlane_b32 s{sA}, v{vSTAMP}, 63")
        e("s_nop 3")
        e(f"s_add_u32 s{sA}, s{sA}, s{sLAT}")
        e(f"v_writelane_b32 v{vSTAMP}, s{sA}, 12")
        e(f"s_sub_u32 s{sA}, s{sA}, s{sLAT}")
        e(f"s_mul_i32 s{sBt}, s{sIT}, 100")
        e(f"s_add_u32 s{sA}, s{sA}, s{sBt}")
        e(f"v_writelane_b32 v{vSTAMP}, s{sA}, 13")
    e(f"v_mov_b32 v{vTMP1}, v{vLs}")
    e("s_nop 1")
    e(f"v_permlane32_swap_b32 v{vLs}, v{vTMP1}")
    e(f"v_add_f32 v{vLs}, v{vLs}, v{vTMP1}")
    e(f"v_mov_b32 v{vTMP1}, v{vLs}")
    e("s_nop 1")
    e(f"v_permlane16_swap_b32 v{vLs}, v{vTMP1}")
    e(f"v_add_f32 v{vF+1}, v{vLs}, v{vTMP1}")
    e(f"v_mov_b32 v{vF}, v{vM}")
    e(f"v_bfe_u32 v{vTMP0}, v{vL}, 2, 2")
    e(f"v_lshrrev_b32 v{vTMP1}, 4, v{vL}")
    e(f"v_lshlrev_b32 v{vTMP2}, 9, v{vTMP0}")
    e(f"v_lshl_add_u32 v{vTMP2}, v{vTMP1}, 7, v{vTMP2}")
    e(f"s_lshl_b32 s{sA}, s{sW}, 11")
    e(f"s_add_u32 s{sA}, s{sA}, {L_OC}")
    e(f"v_add_u32 v{vTMP2}, s{sA}, v{vTMP2}")
    e(f"s_lshl_b32 s{sA}, s{sW}, 3")
    e(f"s_add_u32 s{sA}, s{sA}, {L_ML}")
    e(f"v_lshl_add_u32 v{vTMP3}, v{vTMP0}, 6, s{sA}")
    e(f"s_mov_b64 exec, {sr(sMQ0,2)}")
    for m in range(8):
        e(f"ds_write_b128 v{vTMP2}, {vr(vO+4*m,4)} offset:{m*16}")
    e("s_mov_b64 exec, 0x1111")
    e(f"ds_write_b64 v{vTMP3}, {vr(vF,2)}")
    e("s_mov_b64 exec, -1")
    e("s_waitcnt lgkmcnt(0)")
    e("s_barrier")
    if XNOEXTRA:
        stamp(fixed=5)
        e("s_branch L_end2")
    e(f"s_cmp_gt_u32 s{sW}, 4")
    e("s_cbranch_scc1 L_end2")
    e(f"s_cmp_eq_u32 s{sW}, 4")
    e("s_cbranch_scc1 L_final")
    e(f"v_lshlrev_b32 v{vTMP0}, 3, v0")
    e(f"v_add_u32 v{vTMP0}, {L_OC}, v{vTMP0}")
    e(f"s_lshl_b32 s{sA}, s{sW}, 6")
    e(f"s_add_u32 s{sA}, s{sA}, {L_ML}")
    e(f"v_mov_b32 v{vTMP1}, s{sA}")
    vR = vO
    for i in range(4): e(f"ds_read_b128 {vr(vR+4*i,4)}, v{vTMP1} offset:{16*i}")
    for w in range(8): e(f"ds_read_b64 {vr(vR+16+2*w,2)}, v{vTMP0} offset:{2048*w}")
    e(f"s_lshr_b32 s{sA}, s{sKV}, 19")
    e(f"s_lshl_b32 s{sBt}, s{sA}, 10")
    e(f"s_add_u32 s{sBt}, s{sBt}, {WS_PO}")
    e(f"s_lshr_b32 s{sCt}, s{sA}, 2")
    e(f"s_lshl_b32 s{sCt}, s{sCt}, 7")
    e(f"s_lshl_b32 s{sA}, s{sSPL}, 3")
    e(f"s_add_u32 s{sCt}, s{sCt}, s{sA}")
    e(f"s_lshl_b32 s{sA}, s{sW}, 5")
    e(f"s_add_u32 s{sCt}, s{sCt}, s{sA}")
    e(f"s_add_u32 s{sCt}, s{sCt}, {WS_ML}")
    e(f"v_lshlrev_b32 v{vA2}, 2, v0")
    e("s_waitcnt lgkmcnt(8)")
    e(f"v_max3_f32 v{vF}, v{vR}, v{vR+2}, v{vR+4}")
    e(f"v_max3_f32 v{vF}, v{vF}, v{vR+6}, v{vR+8}")
    e(f"v_max3_f32 v{vF}, v{vF}, v{vR+10}, v{vR+12}")
    e(f"v_max_f32 v{vF}, v{vF}, v{vR+14}")
    for w in range(8): e(f"v_sub_f32 v{vT+w}, v{vR+2*w}, v{vF}")
    for w in range(8): e(f"v_exp_f32 v{vT+w}, v{vT+w}")
    e(f"v_mul_f32 v{vF+1}, v{vT}, v{vR+1}")
    for w in range(1, 8): e(f"v_fmac_f32 v{vF+1}, v{vT+w}, v{vR+2*w+1}")
    e(f"v_rcp_f32 v{vTMP2}, v{vF+1}")
    e("s_waitcnt lgkmcnt(0)")
    e(f"v_mul_f32 v{vTMP0}, v{vT}, v{vR+16}")
    e(f"v_mul_f32 v{vTMP1}, v{vT}, v{vR+17}")
    for w in range(1, 8):
        e(f"v_fmac_f32 v{vTMP0}, v{vT+w}, v{vR+16+2*w}")
        e(f"v_fmac_f32 v{vTMP1}, v{vT+w}, v{vR+17+2*w}")
    e(f"v_mul_f32 v{vTMP0}, v{vTMP0}, v{vTMP2}")
    e(f"v_mul_f32 v{vTMP1}, v{vTMP1}, v{vTMP2}")
    e(f"v_cvt_pk_bf16_f32 v{vTMP0}, v{vTMP0}, v{vTMP1}")
    e(f"v_min_u32 v{vTMP0}, -2, v{vTMP0}")
    e(f"v_min_u32 v{vF}, -2, v{vF}")
    e(f"v_min_u32 v{vF+1}, -2, v{vF+1}")
    e(f"buffer_store_dword v{vTMP0}, v{vA2}, {sr(SWS,4)}, s{sBt} offen sc1")
    e(f"v_mov_b32 v{vTMP1}, 0")
    e("s_mov_b64 exec, 1")
    e(f"buffer_store_dwordx2 {vr(vF,2)}, v{vTMP1}, {sr(SWS,4)}, s{sCt} offen sc1")
    e("s_mov_b64 exec, -1")
    stamp()
    vG = vVA; vGM = vVA + 8
    sG1, sG2 = sBt, sCt
    e(f"v_and_b32 v{vTMP0}, 7, v{vL}")
    e(f"v_lshrrev_b32 v{vTMP1}, 4, v{vL}")
    e(f"v_bfe_u32 v{vTMP2}, v{vL}, 3, 1")
    e(f"v_lshlrev_b32 v{vA2}, 15, v{vTMP0}")
    e(f"v_lshl_add_u32 v{vA2}, v{vTMP1}, 4, v{vA2}")
    e(f"v_lshl_add_u32 v{vA2}, v{vTMP2}, 3, v{vA2}")
    e(f"v_lshlrev_b32 v{vA2+1}, 10, v{vTMP0}")
    e(f"s_lshr_b32 s{sA}, s{sU}, 2")
    e(f"s_and_b32 s{sD}, s{sU}, 3")
    e(f"s_lshl_b32 s{sG1}, s{sA}, 12")
    e(f"s_lshl_b32 s{sG2}, s{sA}, 7")
    e(f"s_lshl_b32 s{sA}, s{sD}, 8")
    e(f"s_add_u32 s{sG1}, s{sG1}, s{sA}")
    e(f"s_lshl_b32 s{sA}, s{sW}, 6")
    e(f"s_add_u32 s{sG1}, s{sG1}, s{sA}")
    e(f"s_add_u32 s{sG1}, s{sG1}, {WS_PO}")
    e(f"s_lshl_b32 s{sA}, s{sD}, 5")
    e(f"s_add_u32 s{sG2}, s{sG2}, s{sA}")
    e(f"s_add_u32 s{sG2}, s{sG2}, {WS_ML}")
    def gather():
        for s in range(4):
            e(f"buffer_load_dwordx2 {vr(vG+2*s,2)}, v{vA2}, {sr(SWS,4)}, s{sG1} offen offset:{1024*s} sc1")
        e(f"buffer_load_dwordx4 {vr(vGM,4)}, v{vA2+1}, {sr(SWS,4)}, s{sG2} offen sc1")
        e(f"buffer_load_dwordx4 {vr(vGM+4,4)}, v{vA2+1}, {sr(SWS,4)}, s{sG2} offen offset:16 sc1")
    gather()
    e(f"s_lshl_b32 s{sA}, s{sW}, 12")
    e(f"v_add_u32 v{vTMP3}, s{sA}, v{vVO}")
    for t in range(4):
        e(f"ds_read_b128 {vr(vKA+4*t,4)}, v{vTMP3} offset:{L_WO + t*1024}")
    e("s_waitcnt lgkmcnt(0)")
    for m in range(8):
        sel = sSEL1 if m & 1 else sSEL0
        e(f"v_perm_b32 v{vKA+16+2*m}, v{vKA+4+(m>>1)}, v{vKA+(m>>1)}, s{sel}")
        e(f"v_perm_b32 v{vKA+17+2*m}, v{vKA+12+(m>>1)}, v{vKA+8+(m>>1)}, s{sel}")
    e(f"s_mov_b32 s{sSPIN}, 400000")
    e.label("L_gat_chk")
    e("s_waitcnt vmcnt(0)")
    regs = [vG + i for i in range(16)]
    e(f"v_max3_u32 v{vTMP0}, v{regs[0]}, v{regs[1]}, v{regs[2]}")
    for i in range(3, 15, 2):
        e(f"v_max3_u32 v{vTMP0}, v{vTMP0}, v{regs[i]}, v{regs[i+1]}")
    e(f"v_max_u32 v{vTMP0}, v{vTMP0}, v{regs[15]}")
    e(f"v_cmp_eq_u32 vcc, -1, v{vTMP0}")
    e("s_cbranch_vccz L_gat_ok")
    e("s_sleep 1")
    gather()
    e(f"s_sub_u32 s{sSPIN}, s{sSPIN}, 1")
    e(f"s_cmp_lg_u32 s{sSPIN}, 0")
    e("s_cbranch_scc1 L_gat_chk")
    e("s_waitcnt vmcnt(0)")
    e.label("L_gat_ok")
    stamp()
    e(f"v_max3_f32 v{vTMP0}, v{vGM}, v{vGM+2}, v{vGM+4}")
    e(f"v_max_f32 v{vTMP0}, v{vTMP0}, v{vGM+6}")
    for s in range(4): e(f"v_sub_f32 v{vGM+2*s}, v{vGM+2*s}, v{vTMP0}")
    for s in range(4): e(f"v_exp_f32 v{vGM+2*s}, v{vGM+2*s}")
    e("s_nop 0")
    for s in range(4): e(f"v_mul_f32 v{vGM+2*s}, v{vGM+2*s}, v{vGM+2*s+1}")
    e(f"v_add_f32 v{vTMP0}, v{vGM}, v{vGM+2}")
    e(f"v_add_f32 v{vTMP1}, v{vGM+4}, v{vGM+6}")
    e(f"v_add_f32 v{vTMP0}, v{vTMP0}, v{vTMP1}")
    e(f"v_rcp_f32 v{vTMP0}, v{vTMP0}")
    e("s_nop 0")
    for s in range(4): e(f"v_mul_f32 v{vGM+2*s}, v{vGM+2*s}, v{vTMP0}")
    for s in range(4):
        for i in range(2):
            e(f"v_lshlrev_b32 v{vTMP0}, 16, v{vG+2*s+i}")
            e(f"v_and_b32 v{vTMP1}, 0xffff0000, v{vG+2*s+i}")
            op = "v_mul_f32" if s == 0 else "v_fmac_f32"
            e(f"{op} v{vT+2*i}, v{vTMP0}, v{vGM+2*s}")
            e(f"{op} v{vT+2*i+1}, v{vTMP1}, v{vGM+2*s}")
    for i in range(2):
        e(f"v_cvt_pk_bf16_f32 v{vP+i}, v{vT+2*i}, v{vT+2*i+1}")
    r2_core("w", L_WO, L_RW, L_CNT + 4, None, vKA + 16, vVB, 0, 1)
    stamp()
    stamp_flush()
    e("s_endpgm")
    e.label("L_final")
    e(f"s_lshl_b32 s{sBt}, s{sWG}, 12")
    e(f"s_add_u32 s{sBt}, s{sBt}, {WS_A}")
    def fgather():
        for i in range(3):
            e(f"buffer_load_dwordx4 {vr(vG+4*i,4)}, v{vVO}, {sr(SWS,4)}, s{sBt} offen offset:{1024*i} sc1")
    fgather()
    e(f"s_lshl_b32 s{sA}, s{sB}, 10")
    e(f"s_bfe_u32 s{sCt}, s{sWG}, 0x40001")
    e(f"s_lshl_b32 s{sCt}, s{sCt}, 6")
    e(f"s_add_u32 s{sA}, s{sA}, s{sCt}")
    e(f"s_and_b32 s{sCt}, s{sWG}, 1")
    e(f"s_lshl_b32 s{sCt}, s{sCt}, 3")
    e(f"s_add_u32 s{sA}, s{sA}, s{sCt}")
    e(f"v_and_b32 v{vA2}, 3, v{vL}")
    e(f"v_lshlrev_b32 v{vA2}, 1, v{vA2}")
    e(f"v_sub_f32 v{vTMP3}, 1.0, v{vGAM}")
    e(f"s_mov_b32 s{sSPIN}, 400000")
    e.label("L_fin_chk")
    e("s_waitcnt vmcnt(0)")
    regs = [vG + i for i in range(12)]
    e(f"v_max3_u32 v{vTMP0}, v{regs[0]}, v{regs[1]}, v{regs[2]}")
    for i in range(3, 11, 2):
        e(f"v_max3_u32 v{vTMP0}, v{vTMP0}, v{regs[i]}, v{regs[i+1]}")
    e(f"v_max_u32 v{vTMP0}, v{vTMP0}, v{regs[11]}")
    e(f"v_cmp_eq_u32 vcc, -1, v{vTMP0}")
    e("s_cbranch_vccz L_fin_ok")
    e("s_sleep 1")
    fgather()
    e(f"s_sub_u32 s{sSPIN}, s{sSPIN}, 1")
    e(f"s_cmp_lg_u32 s{sSPIN}, 0")
    e("s_cbranch_scc1 L_fin_chk")
    e("s_waitcnt vmcnt(0)")
    e.label("L_fin_ok")
    stampno[0] = 8
    stamp()
    for r in range(4):
        e(f"v_add_f32 v{vT+r}, v{vG+r}, v{vG+4+r}")
        e(f"v_mul_f32 v{vT+r}, v{vT+r}, v{vGAM}")
        e(f"v_fmac_f32 v{vT+r}, v{vG+8+r}, v{vTMP3}")
    for sh in (4, 8):
        e("s_nop 0")
        for r in range(4):
            e(f"v_add_f32_dpp v{vT+r}, v{vT+r}, v{vT+r} row_ror:{sh} row_mask:0xf bank_mask:0xf")
    for swp in ("v_permlane32_swap_b32", "v_permlane16_swap_b32"):
        for r in range(4): e(f"v_mov_b32 v{vT+4+r}, v{vT+r}")
        e("s_nop 0")
        for r in range(4): e(f"{swp} v{vT+r}, v{vT+4+r}")
        for r in range(4): e(f"v_add_f32 v{vT+r}, v{vT+r}, v{vT+4+r}")
    e("s_nop 0")
    for r in range(4):
        e(f"v_mov_b32_dpp v{vT+4+r}, v{vT+r} quad_perm:[1,1,3,3] row_mask:0xf bank_mask:0xf")
    for r in range(4):
        e(f"v_cvt_pk_bf16_f32 v{vT+r}, v{vT+r}, v{vT+4+r}")
    e("s_mov_b64 exec, 5")
    for r in range(4):
        e(f"buffer_store_dword v{vT+r}, v{vA2}, {sr(SOUT,4)}, s{sA} offen offset:{16*r}")
    e(f"s_cmp_lg_u32 s{sWG}, 0")
    e("s_cbranch_scc1 L_noepoch")
    e("s_mov_b64 exec, 1")
    e(f"v_mov_b32 v{vP}, s{sT0}"); e(f"v_mov_b32 v{vP+1}, s{sT1}")
    e(f"buffer_store_dwordx2 {vr(vP,2)}, v{vA2}, {sr(SWS,4)}, 0 offen offset:{WS_E} sc1")
    e.label("L_noepoch")
    e("s_mov_b64 exec, -1")
    stamp()
    e.label("L_end2")
    stamp_flush()
    e.label("L_end")
    e("s_endpgm")
    e.label("L_x_issue")
    if XSTEAL:
        e(f"s_lshr_b32 s{sA}, s{sPB}, 16")
        e(f"s_add_u32 s{sA}, s{sA}, {WS_HELLO}")
        e(f"s_load_dwordx8 {sr(sHB,8)}, {sr(P(12),2)}, s{sA} glc")
    if XNOEXTRA: e("s_branch L_loop_b")
    extras_issue()
    e("s_branch L_loop_b")
    e.label("L_x_process")
    if XSTEAL:
        e("s_waitcnt lgkmcnt(0)")
        for i in range(4):
            e(f"s_xor_b64 {sr(sHB+2*i,2)}, {sr(sHB+2*i,2)}, {sr(sT0,2)}")
        e(f"s_or_b64 {sr(sHB,2)}, {sr(sHB,2)}, {sr(sHB+2,2)}")
        e(f"s_or_b64 {sr(sHB+4,2)}, {sr(sHB+4,2)}, {sr(sHB+6,2)}")
        e(f"s_or_b64 {sr(sHB,2)}, {sr(sHB,2)}, {sr(sHB+4,2)}")
        e(f"s_cselect_b32 s{sVMAX}, 1, 4")
    if XNOEXTRA: e("s_branch L_loop_c")
    extras_process()
    e("s_branch L_loop_c")
    e.label("L_code_end")
    e("s_endpgm")
    e.L.append('.section .rodata,"a"'); e.L.append(".p2align 6")
    e.L.append(f".amdhsa_kernel {KNAME}")
    e(f".amdhsa_next_free_vgpr {NVGPR}")
    e(".amdhsa_next_free_sgpr 102")
    e(f".amdhsa_accum_offset {(NVGPR+3)//4*4}")
    e(".amdhsa_group_segment_fixed_size 0"); e(".amdhsa_kernarg_size 104"); e(".amdhsa_user_sgpr_count 2")
    e(".amdhsa_user_sgpr_kernarg_segment_ptr 1"); e(".amdhsa_system_sgpr_workgroup_id_x 1")
    e.L.append(".end_amdhsa_kernel")
    t = e.text()
    t = t.replace("  CODEPF2\n", "")
    return t

if __name__ == "__main__":
    out = sys.argv[1]
    opts = json.loads(sys.argv[2]) if len(sys.argv) > 2 else {}
    open(out, "w").write(build(**opts))
```
